```python
import torch

def _softmax(x, axis=-1):
    return torch.softmax(x, dim=axis)
def _gelu(x):
    return torch.nn.functional.gelu(x, approximate="tanh")
def _silu(x):
    return torch.nn.functional.silu(x)
def _sigmoid(x):
    return torch.sigmoid(x)
def _layernorm(x, axis=-1, eps=1e-5):
    m = x.mean(dim=axis, keepdim=True)
    v = x.var(dim=axis, keepdim=True, unbiased=False)
    return (x - m) / torch.sqrt(v + eps)
def _scatter_add(tgt, idx, src, axis=0):
    return tgt.clone().index_add_(axis, idx, src)
def _segment_sum(src, seg, n):
    out = torch.zeros((n,) + src.shape[1:], dtype=src.dtype)
    return out.index_add_(0, seg, src)
def _pad(x, pw):
    flat = tuple(v for pair in reversed(pw) for v in pair)
    return torch.nn.functional.pad(x, flat)

kernel_name = 'recurrent_scan__sliding_block_cached__moe_arch_mod__prompt'

def setup_inputs():

    _w = (lambda a: (lambda t: t.to(torch.bfloat16) if t.is_floating_point() else t)(torch.as_tensor(a)))
    def _A_setup():
        B, Sq, D = 1, 2048, 512
        Hq, Hkv, Sk, Dh = 32, 32, 2048, 128
        assert Hq % Hkv == 0, (Hq, Hkv)
        return {
            "x": _w((lambda *s: torch.randn(*s, dtype=torch.bfloat16) * 0.05)(B, Sq, D)),
            "k_cache": _w((lambda *s: torch.randn(*s, dtype=torch.bfloat16) * 0.8)(B, Hkv, Sk, Dh)),
            "v_cache": _w((lambda *s: torch.randn(*s, dtype=torch.bfloat16) * 0.2)(B, Hkv, Sk, Dh)),
            "wq": _w((lambda *s: torch.randn(*s, dtype=torch.bfloat16) * 0.8)(D, Hq * Dh) * (D ** -0.5)),
            "wo": _w((lambda *s: torch.randn(*s, dtype=torch.bfloat16) * 0.2)(Hq * Dh, D) * ((Hq * Dh) ** -0.5)),
        }
    _A_in = _A_setup()

    def _B_setup():
        B, S, D, F, C = 1, 2048, 512, 1376, 1
        return {
            "x": _w((lambda *s: torch.randn(*s, dtype=torch.bfloat16) * 0.05)(B, S, D)),
            "w_r": _w((lambda *s: torch.randn(*s, dtype=torch.bfloat16) * 0.2)(D)),
            "w_gate": _w((lambda *s: torch.randn(*s, dtype=torch.bfloat16) * 0.1)(D, F)),
            "w_up": _w((lambda *s: torch.randn(*s, dtype=torch.bfloat16) * 0.1)(D, F)),
            "w_down": _w((lambda *s: torch.randn(*s, dtype=torch.bfloat16) * 0.1)(F, D)),
        }
    _B_in = _B_setup()

    return {
        "A_x": _A_in["x"],
        "A_k_cache": _A_in["k_cache"],
        "A_v_cache": _A_in["v_cache"],
        "A_wq": _A_in["wq"],
        "A_wo": _A_in["wo"],
        "B_x": _B_in["x"],
        "B_w_r": _B_in["w_r"],
        "B_w_gate": _B_in["w_gate"],
        "B_w_up": _B_in["w_up"],
        "B_w_down": _B_in["w_down"],
    }

def reference(A_x, A_k_cache, A_v_cache, A_wq, A_wo, B_x, B_w_r, B_w_gate, B_w_up, B_w_down):
    def _A_ref(x, k_cache, v_cache, wq, wo):
        B, Sq, D = x.shape
        Hq, Dh = 32, 128
        Hkv, Sk = k_cache.shape[1], k_cache.shape[2]
        W = min(4096, max(256, Sk // 4))
        rep = Hq // Hkv
        q = (lambda x, *d: x.permute(*d))((x @ wq).reshape(B, Sq, Hq, Dh), 0, 2, 1, 3)
        k = (lambda x, n, axis: torch.repeat_interleave(x, n, dim=axis))(k_cache[:, :, Sk - W:, :], rep, axis=1)
        v = (lambda x, n, axis: torch.repeat_interleave(x, n, dim=axis))(v_cache[:, :, Sk - W:, :], rep, axis=1)
        scores = torch.einsum("bhqd,bhkd->bhqk", q, k) * (Dh ** -0.5)
        p = _softmax(scores, axis=-1)
        o = torch.einsum("bhqk,bhkd->bhqd", p, v)
        return (lambda x, *d: x.permute(*d))(o, 0, 2, 1, 3).reshape(B, Sq, Hq * Dh) @ wo

    def _B_ref(x, w_r, w_gate, w_up, w_down):
        B, S, D = x.shape
        C = 1
        r = x @ w_r
        idx = torch.argsort(-r, axis=-1)[:, :C]
        idx_e = (lambda x, n, axis: torch.repeat_interleave(x, n, dim=axis))(idx.reshape(B, C, 1), D, axis=2)
        x_sel = (lambda x, i, axis: torch.take_along_dim(x, i, dim=axis))(x, idx_e, axis=1)
        g = _silu(x_sel @ w_gate)
        u = x_sel @ w_up
        y = (g * u) @ w_down
        r_sel = _sigmoid((lambda x, i, axis: torch.take_along_dim(x, i, dim=axis))(r, idx, axis=1))
        y = y * r_sel.reshape(B, C, 1)
        b_off = (torch.arange(B) * S).reshape(B, 1)
        flat_idx = (idx + b_off).reshape(B * C)
        zero = (x * 0.0).reshape(B * S, D)
        upd = _scatter_add(zero, flat_idx, y.reshape(B * C, D), axis=0)
        return x + upd.reshape(B, S, D)

    x = A_x
    xn = _layernorm(x, axis=-1)
    s = _A_ref(xn, A_k_cache, A_v_cache, A_wq, A_wo)
    g = _silu(_B_ref(xn, B_w_r, B_w_gate, B_w_up, B_w_down))
    return x + s * g
```

```python
import re

TRANS = ("v_exp_f32", "v_log_f32", "v_rcp_f32", "v_rsq_f32", "v_sqrt_f32", "v_sin_f32", "v_cos_f32")


def v(i, n=1):
    return f"v{i}" if n == 1 else f"v[{i}:{i + n - 1}]"


def a(i, n=1):
    return f"a{i}" if n == 1 else f"a[{i}:{i + n - 1}]"


def s(i, n=1):
    return f"s{i}" if n == 1 else f"s[{i}:{i + n - 1}]"


_RANGE = re.compile(r"^([vas])\[(\d+):(\d+)\]$")
_ONE = re.compile(r"^([vas])(\d+)$")


def regs_of(tok):
    tok = tok.strip()
    tok = tok.lstrip("-")
    if tok.startswith("abs(") and tok.endswith(")"):
        tok = tok[4:-1]
    if tok.startswith("|") and tok.endswith("|"):
        tok = tok[1:-1]
    m = _RANGE.match(tok)
    if m:
        return [f"{m.group(1)}{i}" for i in range(int(m.group(2)), int(m.group(3)) + 1)]
    m = _ONE.match(tok)
    if m:
        return [tok]
    if tok in ("vcc", "exec", "m0", "scc"):
        return [tok]
    if tok in ("vcc_lo", "vcc_hi"):
        return ["vcc"]
    if tok in ("exec_lo", "exec_hi"):
        return ["exec"]
    return []


class Ins:
    def __init__(self, text, tag=None, comment=None):
        self.text = text.strip()
        self.tag = tag
        self.kind = None
        self.rd = set()
        self.wr = set()
        self.states = 1
        self.auto = False
        self.mf = None
        self.dpp = False
        self.parse()

    def parse(self):
        t = self.text.split(";")[0].strip()
        if not t:
            self.kind = "comment"
            self.states = 0
            return
        if t.endswith(":"):
            self.kind = "label"
            self.states = 0
            return
        if t.startswith("."):
            self.kind = "directive"
            self.states = 0
            return
        parts = t.split(None, 1)
        op = parts[0]
        self.op = op
        rest = parts[1] if len(parts) > 1 else ""
        ops = []
        depth = 0
        cur = ""
        for ch in rest:
            if ch in "[(":
                depth += 1
            if ch in "])":
                depth -= 1
            if ch == "," and depth == 0:
                ops.append(cur.strip())
                cur = ""
            else:
                cur += ch
        if cur.strip():
            ops.append(cur.strip())
        mods = ""
        if ops:
            sp = ops[-1].split(None, 1)
            if len(sp) > 1 and not ops[-1].startswith("hwreg"):
                ops[-1] = sp[0]
                mods = sp[1]
        self.ops = ops
        self.mods = mods
        R = [regs_of(o) for o in ops]
        if op == "s_nop":
            self.kind = "nop"
            self.states = int(ops[0], 0) + 1
        elif op == "s_waitcnt":
            self.kind = "wait"
        elif op == "s_barrier":
            self.kind = "barrier"
        elif op.startswith("s_cbranch") or op == "s_branch" or op == "s_endpgm":
            self.kind = "branch"
        elif op.startswith("s_load") or op.startswith("s_buffer_load") or op in ("s_memtime", "s_memrealtime"):
            self.kind = "smem"
            self.wr = set(R[0])
            for r in R[1:]:
                self.rd |= set(r)
        elif op.startswith("s_cmp") or op.startswith("s_bitcmp"):
            self.kind = "salu"
            for r in R:
                self.rd |= set(r)
            self.wr = {"scc"}
        elif op in ("s_setprio", "s_sleep", "s_setreg_b32", "s_setreg_imm32_b32"):
            self.kind = "salu"
        elif op.startswith("s_"):
            self.kind = "salu"
            self.wr = set(R[0]) | {"scc"}
            for r in R[1:]:
                self.rd |= set(r)
            if "saveexec" in op:
                self.wr.add("exec")
                self.rd.add("exec")
            if op in ("s_addk_i32", "s_mulk_i32"):
                self.rd |= set(R[0])
        elif op.startswith("v_mfma"):
            self.kind = "mfma"
            passes = 8 if "32x32x16" in op else 4 if "16x16x32" in op else None
            assert passes, op
            self.mf = (R[0], R[1], R[2], R[3], passes)
            self.wr = set(R[0])
            self.rd = set(R[1]) | set(R[2]) | set(R[3])
        elif op.startswith("ds_read") or op.startswith("ds_bpermute") or op.startswith("ds_swizzle"):
            self.kind = "ds_read"
            self.wr = set(R[0])
            for r in R[1:]:
                self.rd |= set(r)
        elif op.startswith("ds_write"):
            self.kind = "ds_write"
            for r in R:
                self.rd |= set(r)
        elif op.startswith("buffer_load") or op.startswith("global_load"):
            if " lds" in (" " + mods) or "_lds_" in op:
                self.kind = "vm_lds"
                for r in R:
                    self.rd |= set(r)
                self.rd.add("m0")
            else:
                self.kind = "vm_load"
                self.wr = set(R[0])
                for r in R[1:]:
                    self.rd |= set(r)
        elif op.startswith("buffer_store") or op.startswith("global_store"):
            self.kind = "vm_store"
            for r in R:
                self.rd |= set(r)
            self.data = set(R[0]) if op.startswith("buffer") else set(R[1])
            self.wide = op.endswith("x4") or op.endswith("x3")
        elif op.startswith("buffer_atomic") or op.startswith("global_atomic"):
            self.kind = "vm_store"
            for r in R:
                self.rd |= set(r)
            self.data = set()
            self.wide = False
            if "sc0" in mods:
                self.kind = "vm_load"
                self.wr = set(R[0])
        elif op in ("buffer_wbl2", "buffer_inv"):
            self.kind = "vm_store"
            self.data = set()
            self.wide = False
        elif op.startswith("v_"):
            base = op
            for suf in ("_e32", "_e64", "_dpp", "_sdwa"):
                if base.endswith(suf):
                    base = base[: -len(suf)]
            self.base = base
            self.kind = "trans" if base in TRANS else "valu"
            self.dpp = op.endswith("_dpp")
            if base.startswith("v_cmp"):
                self.wr = set(R[0])
                for r in R[1:]:
                    self.rd |= set(r)
                if base.startswith("v_cmpx"):
                    self.wr.add("exec")
            elif base.startswith("v_permlane") and "swap" in base:
                self.wr = set(R[0]) | set(R[1])
                self.rd = set(R[0]) | set(R[1])
            elif base in ("v_add_co_u32", "v_sub_co_u32", "v_addc_co_u32", "v_subb_co_u32"):
                self.wr = set(R[0]) | set(R[1])
                for r in R[2:]:
                    self.rd |= set(r)
            else:
                self.wr = set(R[0])
                for r in R[1:]:
                    self.rd |= set(r)
                if base in ("v_fmac_f32", "v_dot2c_f32_bf16", "v_pk_fmac_f16") or self.dpp:
                    self.rd |= set(R[0])
                if base == "v_cndmask_b32" and len(ops) == 3:
                    self.rd.add("vcc")
                if base == "v_writelane_b32":
                    self.rd |= set(R[0])
        else:
            raise ValueError("unknown instruction: " + t)


class Pseudo:
    def __init__(self, what, arg=None):
        self.what = what
        self.arg = arg
        self.kind = "pseudo"
        self.states = 0


class Kernel:
    def __init__(self, name):
        self.name = name
        self.items = []
        self.tail = []

    def __call__(self, text, tag=None):
        for line in text.split("\n"):
            if line.strip():
                self.items.append(Ins(line, tag))

    def add(self, ins):
        if isinstance(ins, str):
            self(ins)
        elif isinstance(ins, tuple):
            self(ins[0], ins[1])
        else:
            self.items.append(ins)

    def wait_tag(self, tag):
        self.items.append(Pseudo("wait_vm_tag", tag))

    def wait_lgkm_all(self):
        self.items.append(Pseudo("wait_lgkm_all"))

    def loop_begin(self, label):
        self.items.append(Pseudo("loop_begin", label))
        self(label + ":")

    def loop_end(self):
        self.items.append(Pseudo("loop_end"))

    def reset(self):
        self.items.append(Pseudo("reset"))

    def finalize(self, lgkm_slack=0, verbose=False):
        items = self.items
        segs = []
        cur = []
        for it in items:
            if isinstance(it, Pseudo) and it.what == "loop_begin":
                segs.append(("lin", cur))
                cur = []
            elif isinstance(it, Pseudo) and it.what == "loop_end":
                segs.append(("loop", cur))
                cur = []
            else:
                cur.append(it)
        segs.append(("lin", cur))
        st = WaitState()
        out = []
        for kind, seg in segs:
            if kind == "lin":
                req = {}
                st = wait_pass(seg, st, req, lgkm_slack)
                out.append((kind, apply_waits(seg, req)))
            else:
                req = {}
                st0 = st.copy()
                for _ in range(6):
                    before = dict(req)
                    st1 = wait_pass(seg, st0.copy(), req, lgkm_slack)
                    st2 = wait_pass(seg, st1.copy(), req, lgkm_slack)
                    st3 = wait_pass(seg, st2.copy(), req, lgkm_slack)
                    if before == req:
                        break
                else:
                    raise RuntimeError("loop waits did not converge")
                st = st3.merge(st1).merge(st2)
                out.append((kind, apply_waits(seg, req)))
        hist = []
        final = []
        nnop = 0
        for kind, seg in out:
            if kind == "lin":
                seg2, hist, n = hazard_pass(seg, hist)
                nnop += n
                final.extend(seg2)
            else:
                seg2, h1, n = hazard_pass(seg, list(hist))
                seg3, h2, n2 = hazard_pass(seg2, list(h1))
                seg4, h3, n3 = hazard_pass(seg3, list(h2))
                assert n3 == 0
                seg5, _, n4 = hazard_pass(seg4, list(hist))
                assert n4 == 0
                if verbose and (n or n2):
                    print(f"[{self.name}] loop: inserted {n + n2} nop groups")
                nnop += n + n2
                hist = h3
                final.extend(seg4)
        self.final = final
        return final

    def text(self):
        lines = []
        for it in self.final:
            if isinstance(it, Pseudo):
                continue
            if it.kind == "label":
                lines.append(it.text)
            else:
                lines.append("    " + it.text)
        lines.extend(self.tail)
        return "\n".join(lines) + "\n"


class WaitState:
    def __init__(self):
        self.vm = []
        self.lg = []
        self.smem = set()

    def copy(self):
        w = WaitState()
        w.vm = list(self.vm)
        w.lg = list(self.lg)
        w.smem = set(self.smem)
        return w

    def merge(self, o):
        def mq(x, y):
            lo, sh = (x, y) if len(x) >= len(y) else (y, x)
            for i in range(1, len(sh) + 1):
                if lo[-i][0] != sh[-i][0]:
                    raise RuntimeError(f"queue mismatch at merge: {lo[-i]} vs {sh[-i]}")
            return list(lo)

        w = WaitState()
        w.vm = mq(self.vm, o.vm)
        w.lg = mq(self.lg, o.lg)
        w.smem = self.smem | o.smem
        return w


_WAIT_RE = re.compile(r"(vmcnt|lgkmcnt)\((\d+)\)")


def _apply(st, vm, lg):
    if vm is not None and len(st.vm) > vm:
        st.vm = st.vm[len(st.vm) - vm:] if vm else []
    if lg is not None:
        if len(st.lg) > lg:
            st.lg = st.lg[len(st.lg) - lg:] if lg else []
        if lg == 0:
            st.smem = set()


def wait_pass(seg, st, req, slack):
    clock = 0
    for idx, it in enumerate(seg):
        need_vm = need_lg = None
        if isinstance(it, Pseudo):
            if it.what == "wait_vm_tag":
                last = -1
                for i, (d, tag) in enumerate(st.vm):
                    if tag == it.arg:
                        last = i
                if last >= 0:
                    need_vm = len(st.vm) - 1 - last
            elif it.what == "wait_lgkm_all":
                if st.lg or st.smem:
                    need_lg = 0
            elif it.what == "reset":
                st.vm, st.lg, st.smem = [], [], set()
        elif it.kind == "wait":
            d = dict((k, int(n)) for k, n in _WAIT_RE.findall(it.text))
            _apply(st, d.get("vmcnt"), d.get("lgkmcnt"))
            continue
        elif it.kind in ("label", "comment", "directive"):
            continue
        else:
            touched = it.rd | it.wr
            last = -1
            for i, (d, tag) in enumerate(st.vm):
                if d & touched:
                    last = i
            if last >= 0:
                need_vm = len(st.vm) - 1 - last
            last = -1
            for i, (d, age) in enumerate(st.lg):
                if d & touched:
                    last = i
            if last >= 0:
                while last + 1 < len(st.lg) and slack and (clock - st.lg[last + 1][1]) >= slack:
                    last += 1
                need_lg = len(st.lg) - 1 - last
            if st.smem & touched:
                need_lg = 0
            if need_lg is not None and st.smem:
                need_lg = 0
        cur = req.get(idx, [None, None])
        if need_vm is not None:
            need_vm = min(need_vm, 63)
            cur[0] = need_vm if cur[0] is None else min(cur[0], need_vm)
        if need_lg is not None:
            need_lg = min(need_lg, 15)
            cur[1] = need_lg if cur[1] is None else min(cur[1], need_lg)
        if cur != [None, None]:
            req[idx] = cur
            _apply(st, cur[0], cur[1])
        if isinstance(it, Pseudo):
            continue
        clock += 1
        if it.kind in ("vm_load",):
            st.vm.append((frozenset(it.wr), it.tag))
        elif it.kind in ("vm_lds", "vm_store"):
            st.vm.append((frozenset(), it.tag))
        elif it.kind == "ds_read":
            st.lg.append((frozenset(it.wr), clock))
        elif it.kind == "ds_write":
            st.lg.append((frozenset(), clock))
        elif it.kind == "smem":
            st.smem |= it.wr
            st.smem.add("__any__")
        if len(st.vm) > 63:
            raise RuntimeError(f"vmcnt overflow at {it.text}")
        if len(st.lg) > 15:
            raise RuntimeError(f"lgkmcnt overflow at {it.text}")
    st.lg = [(d, age - clock) for d, age in st.lg]
    return st


def apply_waits(seg, req):
    out = []
    for idx, it in enumerate(seg):
        if idx in req:
            vm, lg = req[idx]
            t = "s_waitcnt"
            if vm is not None:
                t += f" vmcnt({vm})"
            if lg is not None:
                t += f" lgkmcnt({lg})"
            w = Ins(t)
            w.auto = True
            out.append(w)
        out.append(it)
    return out


def is_valu(it):
    return it.kind in ("valu", "trans")


def need_states(p, c):
    n = 0
    if is_valu(p):
        vw = {r for r in p.wr if r[0] in "va" and r != "vcc"}
        sw = {r for r in p.wr if r[0] == "s" or r == "vcc"}
        if c.kind == "mfma" and (vw & c.rd):
            n = max(n, 2)
        if c.kind == "mfma" and "exec" in p.wr:
            n = max(n, 4)
        if is_valu(c):
            if p.kind == "trans" and c.kind != "trans" and (vw & c.rd):
                n = max(n, 1)
            if c.dpp and (vw & c.rd):
                n = max(n, 2)
            if c.base.startswith("v_permlane") and (vw & c.rd):
                n = max(n, 2)
            if c.base in ("v_readlane_b32", "v_readfirstlane_b32") and (vw & c.rd):
                n = max(n, 1)
            if sw & c.rd:
                n = max(n, 4 if c.base in ("v_readlane_b32", "v_writelane_b32") else 2)
            if p.base.startswith("v_dot2") and (vw & (c.rd | c.wr)):
                if c.base == p.base:
                    srcs = set()
                    for o in c.ops[1:3]:
                        srcs |= set(regs_of(o))
                    if vw & srcs:
                        n = max(n, 3)
                else:
                    n = max(n, 3)
            if ("sdwa" in p.op or "op_sel" in p.mods) and (vw & (c.rd | c.wr)) and "dst_sel:DWORD" not in p.mods:
                n = max(n, 1)
            if "exec" in p.wr:
                n = max(n, 5 if c.dpp else 4)
        if p.base.startswith("v_dot2") and c.kind in ("vm_store", "ds_write", "mfma") and (vw & c.rd):
            n = max(n, 3)
        if c.kind in ("vm_load", "vm_lds", "vm_store") and (sw & c.rd):
            n = max(n, 5)
        if c.kind == "salu" and (sw & c.rd):
            n = max(n, 1)
    if p.kind == "mfma":
        D, A, B, C, passes = p.mf
        Ds = set(D)
        big = {4: 8, 8: 12}[passes]
        if c.kind == "mfma":
            D2, A2, B2, C2, p2 = c.mf
            if Ds & (set(A2) | set(B2)):
                n = max(n, big)
            if Ds & set(C2):
                if not (C2 == D and p2 == passes):
                    n = max(n, big - 2)
            elif Ds & set(D2) and D2 != D:
                n = max(n, big)
        elif is_valu(c):
            if Ds & (c.rd | c.wr):
                n = max(n, big)
            if set(C) & c.wr:
                n = max(n, {4: 3, 8: 7}[passes])
        elif c.kind in ("vm_load", "vm_lds", "vm_store", "ds_read", "ds_write"):
            if Ds & (c.rd | c.wr):
                n = max(n, big)
    if p.kind == "salu" and "m0" in p.wr and c.kind == "vm_lds":
        n = max(n, 1)
    if p.kind == "vm_store" and p.wide and (p.data & c.wr):
        n = max(n, 2)
    if p.kind == "ds_write" and is_valu(c):
        pass
    return n


def hazard_pass(seg, hist):
    out = []
    nins = 0
    for it in seg:
        if isinstance(it, Pseudo) or it.kind in ("label", "comment", "directive"):
            out.append(it)
            continue
        dist = 0
        short = 0
        for p in reversed(hist):
            if dist >= 20:
                break
            n = need_states(p, it)
            if n > dist:
                short = max(short, n - dist)
            dist += p.states
        while short > 0:
            k = min(short, 16)
            nop = Ins(f"s_nop {k - 1}")
            nop.auto = True
            out.append(nop)
            hist.append(nop)
            short -= k
            nins += 1
        out.append(it)
        hist.append(it)
        if len(hist) > 40:
            del hist[:-40]
    return out, hist, nins
```

```python
import sys, struct, math
from asmlib import *

NAME = "recurrent_scan__sliding_block_cached__moe_arch_mod__prompt"

KA_X, KA_K, KA_V, KA_WQ, KA_WO, KA_BX, KA_WR, KA_WG, KA_WU, KA_WD, KA_OUT, KA_DBG, KA_WS = [8 * i for i in range(13)]
XN_OFF = 0
XN_SZ = 2048 * 512 * 2
O_OFF = 2 << 20
O_SZ = 2048 * 4096 * 2
R_OFF = 18 << 20
R_SZ = 2048 * 4
YP_OFF = (18 << 20) + 65536
NFF = 172
YP_SZ = NFF * 512 * 4


def f32(x):
    return "0x%08x" % struct.unpack("<I", struct.pack("<f", x))[0]


LOG2E = math.log2(math.e)


def srd(k, d, p, nbytes, off=0, off_s=None):
    if off:
        k(f"s_add_u32 s{d}, s{p}, {hex(off)}")
        k(f"s_addc_u32 s{d + 1}, s{p + 1}, 0")
    else:
        k(f"s_mov_b32 s{d}, s{p}")
        k(f"s_mov_b32 s{d + 1}, s{p + 1}")
    if off_s is not None:
        k(f"s_add_u32 s{d}, s{d}, s{off_s}")
        k(f"s_addc_u32 s{d + 1}, s{d + 1}, 0")
    k(f"s_mov_b32 s{d + 2}, {hex(nbytes)}")
    k(f"s_mov_b32 s{d + 3}, 0x20000")


def rnd_bf16(k, dst, src):
    k(f"v_cvt_pk_bf16_f32 v{dst}, v{src}, v{src}")
    k(f"v_lshlrev_b32 v{dst}, 16, v{dst}")


def row16_reduce(k, reg, tmp, op="v_add_f32"):
    for pat in ("quad_perm:[1,0,3,2]", "quad_perm:[2,3,0,1]", "row_half_mirror", "row_mirror"):
        k(f"{op}_dpp v{tmp}, v{reg}, v{reg} {pat} row_mask:0xf bank_mask:0xf")
        k(f"v_mov_b32 v{reg}, v{tmp}")


def row16_reduce_inplace(k, regs, op="v_add_f32"):
    for pat in ("quad_perm:[1,0,3,2]", "quad_perm:[2,3,0,1]", "row_half_mirror", "row_mirror"):
        for r in regs:
            k(f"{op}_dpp v{r}, v{r}, v{r} {pat} row_mask:0xf bank_mask:0xf")


def descriptor(name, vgpr, accum, sgpr=102):
    return f""".section .rodata,"a"
.p2align 6
.amdhsa_kernel {name}
  .amdhsa_next_free_vgpr {vgpr}
  .amdhsa_next_free_sgpr {sgpr}
  .amdhsa_accum_offset {accum}
  .amdhsa_group_segment_fixed_size 0
  .amdhsa_kernarg_size 104
  .amdhsa_user_sgpr_count 2
  .amdhsa_user_sgpr_kernarg_segment_ptr 1
  .amdhsa_system_sgpr_workgroup_id_x 1
.end_amdhsa_kernel
"""


def header(name):
    return f""".text
.globl {name}
.p2align 8
.type {name},@function
{name}:
"""


def gen_ln():
    k = Kernel("ln_kernel")
    k("s_cmp_ge_u32 s2, 256")
    k("s_cbranch_scc1 L_ln_end")
    k(f"s_load_dwordx2 s[4:5], s[0:1], {KA_X}")
    k(f"s_load_dwordx2 s[6:7], s[0:1], {KA_WR}")
    k(f"s_load_dwordx2 s[8:9], s[0:1], {KA_WS}")
    k("v_lshrrev_b32 v1, 4, v0")
    k("v_and_b32 v2, 15, v0")
    k("s_lshl_b32 s3, s2, 3")
    k("v_add_u32 v3, s3, v1")
    k("v_lshlrev_b32 v4, 10, v3")
    k("v_lshl_add_u32 v4, v2, 4, v4")
    k("v_lshlrev_b32 v5, 4, v2")
    k("v_lshrrev_b32 v6, 5, v3")
    k("v_lshlrev_b32 v6, 15, v6")
    k("v_lshl_add_u32 v6, v2, 9, v6")
    k("v_and_b32 v7, 31, v3")
    k("v_lshl_add_u32 v6, v7, 4, v6")
    k("s_waitcnt lgkmcnt(0)")
    srd(k, 12, 4, XN_SZ)
    srd(k, 16, 6, 1024)
    srd(k, 20, 8, XN_SZ, XN_OFF)
    srd(k, 24, 8, R_SZ, R_OFF)
    X, W, F = 16, 32, 48
    for t in range(4):
        k(f"buffer_load_dwordx4 {v(X + 4 * t, 4)}, v4, s[12:15], 0 offen offset:{256 * t}")
    for t in range(4):
        k(f"buffer_load_dwordx4 {v(W + 4 * t, 4)}, v5, s[16:19], 0 offen offset:{256 * t}")
    k("s_mov_b32 s28, 0xffff0000")
    for i in range(16):
        k(f"v_lshlrev_b32 v{F + 2 * i}, 16, v{X + i}")
        k(f"v_and_b32 v{F + 2 * i + 1}, s28, v{X + i}")
    k(f"v_add_f32 v8, v{F}, v{F + 1}")
    k(f"v_add_f32 v9, v{F + 2}, v{F + 3}")
    for i in range(4, 32, 2):
        k(f"v_add_f32 v8, v8, v{F + i}")
        k(f"v_add_f32 v9, v9, v{F + i + 1}")
    k("v_add_f32 v8, v8, v9")
    row16_reduce_inplace(k, [8])
    k(f"v_mul_f32 v8, {f32(1.0 / 512)}, v8")
    k("v_mov_b32 v9, 0")
    k("v_mov_b32 v10, 0")
    for i in range(0, 32, 2):
        k(f"v_sub_f32 v11, v{F + i}, v8")
        k(f"v_sub_f32 v12, v{F + i + 1}, v8")
        k("v_fmac_f32 v9, v11, v11")
        k("v_fmac_f32 v10, v12, v12")
    k("v_add_f32 v9, v9, v10")
    row16_reduce_inplace(k, [9])
    k(f"v_mul_f32 v9, {f32(1.0 / 512)}, v9")
    rnd_bf16(k, 8, 8)
    rnd_bf16(k, 9, 9)
    k(f"v_add_f32 v9, {f32(1e-5)}, v9")
    rnd_bf16(k, 9, 9)
    k("v_sqrt_f32 v9, v9")
    rnd_bf16(k, 9, 9)
    k("v_rcp_f32 v9, v9")
    k("v_mov_b32 v10, 0")
    for i in range(16):
        k(f"v_sub_f32 v11, v{F + 2 * i}, v8")
        k(f"v_sub_f32 v12, v{F + 2 * i + 1}, v8")
        k("v_cvt_pk_bf16_f32 v11, v11, v12")
        k("v_and_b32 v12, s28, v11")
        k("v_lshlrev_b32 v11, 16, v11")
        k("v_mul_f32 v11, v11, v9")
        k("v_mul_f32 v12, v12, v9")
        k(f"v_cvt_pk_bf16_f32 v{X + i}, v11, v12")
        k(f"v_dot2c_f32_bf16 v10, v{X + i}, v{W + i}")
    for t in range(4):
        k(f"s_mov_b32 s3, {8192 * t}")
        k(f"buffer_store_dwordx4 {v(X + 4 * t, 4)}, v6, s[20:23], s3 offen")
    row16_reduce_inplace(k, [10])
    k("v_cvt_pk_bf16_f32 v10, v10, v10")
    k("v_and_b32 v10, s28, v10")
    k("v_ashrrev_i32 v11, 31, v10")
    k("v_or_b32 v11, 0x80000000, v11")
    k("v_xor_b32 v10, v10, v11")
    k("v_and_b32 v10, s28, v10")
    k("v_sub_u32 v11, 0xffff, v3")
    k("v_or_b32 v10, v10, v11")
    k("v_lshlrev_b32 v12, 2, v3")
    k("v_cmp_eq_u32 vcc, 0, v2")
    k("s_and_saveexec_b64 s[30:31], vcc")
    k("buffer_store_dword v10, v12, s[24:27], 0 offen")
    k("L_ln_end:")
    k("s_endpgm")
    k.finalize()
    return header("ln_kernel") + k.text(), descriptor("ln_kernel", 80, 80, 40)


def emit_argmax(k, srd_r, vt, ldsaddr=0):
    k(f"v_lshlrev_b32 v{vt + 8}, 5, v0")
    k(f"buffer_load_dwordx4 {v(vt, 4)}, v{vt + 8}, {s(srd_r, 4)}, 0 offen")
    k(f"buffer_load_dwordx4 {v(vt + 4, 4)}, v{vt + 8}, {s(srd_r, 4)}, 0 offen offset:16")
    k(f"v_max3_u32 v{vt}, v{vt}, v{vt + 1}, v{vt + 2}")
    k(f"v_max3_u32 v{vt}, v{vt}, v{vt + 3}, v{vt + 4}")
    k(f"v_max3_u32 v{vt}, v{vt}, v{vt + 5}, v{vt + 6}")
    k(f"v_max_u32 v{vt}, v{vt}, v{vt + 7}")
    row16_reduce_inplace(k, [vt], "v_max_u32")
    k(f"v_lshrrev_b32 v{vt + 8}, 4, v0")
    k(f"v_lshlrev_b32 v{vt + 8}, 2, v{vt + 8}")
    k(f"ds_write_b32 v{vt + 8}, v{vt} offset:{ldsaddr}")
    k.wait_lgkm_all()
    k("s_barrier")
    k(f"v_and_b32 v{vt + 8}, 15, v0")
    k(f"v_lshlrev_b32 v{vt + 8}, 2, v{vt + 8}")
    k(f"ds_read_b32 v{vt}, v{vt + 8} offset:{ldsaddr}")
    row16_reduce_inplace(k, [vt], "v_max_u32")


def gen_ffn():
    k = Kernel("ffn_kernel")
    k(f"s_cmp_ge_u32 s2, {NFF}")
    k("s_cbranch_scc1 L_ffn_end")
    k(f"s_load_dwordx4 s[4:7], s[0:1], {KA_WG}")
    k(f"s_load_dwordx2 s[8:9], s[0:1], {KA_WD}")
    k(f"s_load_dwordx2 s[10:11], s[0:1], {KA_WS}")
    k("s_waitcnt lgkmcnt(0)")
    srd(k, 12, 4, 512 * 2752)
    srd(k, 16, 6, 512 * 2752)
    srd(k, 20, 8, 1376 * 1024)
    srd(k, 24, 10, R_SZ, R_OFF)
    srd(k, 28, 10, XN_SZ, XN_OFF)
    srd(k, 32, 10, YP_SZ, YP_OFF)
    k("s_lshl_b32 s3, s2, 4")
    k("s_movk_i32 s36, 5504")
    k("v_mul_lo_u32 v1, v0, s36")
    G, U, D = 16, 24, 32
    k(f"buffer_load_dwordx4 {v(G, 4)}, v1, s[12:15], s3 offen")
    k(f"buffer_load_dwordx4 {v(G + 4, 4)}, v1, s[12:15], s3 offen offset:2752")
    k(f"buffer_load_dwordx4 {v(U, 4)}, v1, s[16:19], s3 offen")
    k(f"buffer_load_dwordx4 {v(U + 4, 4)}, v1, s[16:19], s3 offen offset:2752")
    k("v_lshlrev_b32 v2, 2, v0")
    k("s_lshl_b32 s37, s2, 13")
    k("s_add_u32 s38, s37, 4096")
    for j in range(8):
        k(f"buffer_load_dword v{D + j}, v2, s[20:23], s{37 + j // 4} offen offset:{(j % 4) * 1024}")
    emit_argmax(k, 24, 40, 0)
    k("v_and_b32 v3, 0xffff, v40")
    k("v_sub_u32 v3, 0xffff, v3")
    k("v_lshrrev_b32 v4, 5, v3")
    k("v_lshlrev_b32 v4, 15, v4")
    k("v_and_b32 v5, 31, v3")
    k("v_lshl_add_u32 v4, v5, 4, v4")
    k("v_lshrrev_b32 v5, 2, v0")
    k("v_lshl_add_u32 v4, v5, 9, v4")
    k("v_and_b32 v5, 3, v0")
    k("v_lshl_add_u32 v4, v5, 2, v4")
    k("buffer_load_dword v6, v4, s[28:31], 0 offen")
    k("s_mov_b32 s39, 0xffff0000")
    k("v_lshlrev_b32 v7, 16, v6")
    k("v_and_b32 v8, s39, v6")
    A = 48
    for m, base in ((0, G), (1, U)):
        for i in range(4):
            k(f"v_lshlrev_b32 v9, 16, v{base + i}")
            k(f"v_and_b32 v10, s39, v{base + i}")
            k(f"v_mul_f32 v{A + 8 * m + 2 * i}, v9, v7")
            k(f"v_mul_f32 v{A + 8 * m + 2 * i + 1}, v10, v7")
            k(f"v_lshlrev_b32 v9, 16, v{base + 4 + i}")
            k(f"v_and_b32 v10, s39, v{base + 4 + i}")
            k(f"v_fmac_f32 v{A + 8 * m + 2 * i}, v9, v8")
            k(f"v_fmac_f32 v{A + 8 * m + 2 * i + 1}, v10, v8")
    row16_reduce_inplace(k, list(range(A, A + 16)))
    k("v_lshrrev_b32 v9, 4, v0")
    k("v_lshlrev_b32 v9, 6, v9")
    k("v_and_b32 v10, 15, v0")
    k("v_cmp_eq_u32 vcc, 0, v10")
    k("s_and_saveexec_b64 s[40:41], vcc")
    for q in range(4):
        k(f"ds_write_b128 v9, {v(A + 4 * q, 4)} offset:{256 + 16 * q}")
    k("s_mov_b64 exec, s[40:41]")
    k.wait_lgkm_all()
    k("s_barrier")
    k("v_and_b32 v9, 63, v0")
    k("v_lshlrev_b32 v9, 2, v9")
    for q in range(4):
        k(f"ds_read_b32 v{A + q}, v9 offset:{256 + 256 * q}")
    k(f"v_add_f32 v{A}, v{A}, v{A + 1}")
    k(f"v_add_f32 v{A + 2}, v{A + 2}, v{A + 3}")
    k(f"v_add_f32 v{A}, v{A}, v{A + 2}")
    k(f"v_mov_b32 v{A + 1}, v{A}")
    k(f"v_permlane32_swap_b32 v{A}, v{A + 1}")
    k(f"v_add_f32 v{A}, v{A}, v{A + 1}")
    k(f"v_mov_b32 v{A + 1}, v{A}")
    k(f"v_permlane16_swap_b32 v{A}, v{A + 1}")
    k(f"v_add_f32 v{A}, v{A}, v{A + 1}")
    rnd_bf16(k, A, A)
    k(f"v_mul_f32 v9, {f32(-LOG2E)}, v{A}")
    k("v_exp_f32 v9, v9")
    k("v_add_f32 v9, 1.0, v9")
    k("v_rcp_f32 v9, v9")
    k(f"v_mul_f32 v9, v9, v{A}")
    rnd_bf16(k, 9, 9)
    k(f"v_mov_b32_dpp v10, v{A} row_ror:8 row_mask:0xf bank_mask:0xf")
    k("v_mul_f32 v9, v9, v10")
    rnd_bf16(k, 9, 9)
    for j in range(8):
        k(f"v_readlane_b32 s{44 + j}, v9, {j}")
    k("v_mov_b32 v12, 0")
    k("v_mov_b32 v13, 0")
    for j in range(8):
        k(f"v_lshlrev_b32 v10, 16, v{D + j}")
        k(f"v_and_b32 v11, s39, v{D + j}")
        k(f"v_fmac_f32 v12, s{44 + j}, v10")
        k(f"v_fmac_f32 v13, s{44 + j}, v11")
    k("v_lshlrev_b32 v2, 3, v0")
    k("s_lshl_b32 s3, s2, 11")
    k("buffer_store_dwordx2 v[12:13], v2, s[32:35], s3 offen")
    k("L_ffn_end:")
    k("s_endpgm")
    k.finalize()
    return header("ffn_kernel") + k.text(), descriptor("ffn_kernel", 64, 64, 56)


GRP = 1040
SLOT = 16 * GRP
MF = "v_mfma_f32_32x32x16_bf16"


def gen_attn(LOOK=5):
    k = Kernel("attn_kernel")
    V_KA, V_VA = 8, 12
    V_DW, V_DKV, V_L16 = 16, 17, 18
    V_L, V_TS = 20, 22
    V_E = 24
    V_T = 32
    ACC = 64
    S_ = lambda b, qb: ACC + 32 * b + 16 * qb
    P_ = lambda b, qb, ks: ACC + 64 + 16 * b + 8 * qb + 4 * ks
    NM = lambda qb: ACC + 96 + 16 * qb
    QA = lambda qb, db: ACC + 64 * qb + 16 * db
    QF = lambda qb, ds: 192 + 32 * qb + 4 * ds
    O_ = lambda qb, db: 64 * qb + 16 * db
    XR = lambda u, ks, qb: 128 + 32 * (u & 1) + 8 * ks + 4 * qb
    NRING = 16
    AF = lambda f: 192 + 4 * (f % NRING)
    SX, SW, SK, SV, SO = 8, 12, 16, 20, 24
    S_WAVE, S_W4160, S_T0, S_T1 = 28, 29, 30, 31
    S_KSO, S_VSO, S_KM, S_VM = 32, 33, 34, 35
    S_KRD, S_VRD, S_D = 36, 37, 38
    S_CNT, S_THR, S_SC, S_X0, S_X1, S_WSO = 39, 40, 41, 42, 43, 44

    k("s_cmp_ge_u32 s2, 256")
    k("s_cbranch_scc1 L_attn_end")
    k(f"s_load_dwordx4 s[48:51], s[0:1], {KA_K}")
    k(f"s_load_dwordx2 s[52:53], s[0:1], {KA_WQ}")
    k(f"s_load_dwordx2 s[54:55], s[0:1], {KA_WS}")
    k("v_lshrrev_b32 v1, 6, v0")
    k("v_and_b32 v2, 63, v0")
    k(f"v_readfirstlane_b32 s{S_WAVE}, v1")
    k("s_and_b32 s3, s2, 7")
    k("s_lshr_b32 s4, s2, 3")
    k("s_and_b32 s5, s4, 3")
    k("s_lshl_b32 s3, s3, 2")
    k("s_add_u32 s3, s3, s5")
    k("s_lshr_b32 s4, s4, 2")
    k(f"v_lshlrev_b32 v{V_L16}, 4, v2")
    k("v_lshrrev_b32 v3, 4, v2")
    k("v_and_b32 v4, 15, v2")
    k("v_lshlrev_b32 v5, 2, v3")
    k("v_xor_b32 v4, v4, v5")
    k("v_lshlrev_b32 v4, 4, v4")
    k(f"v_lshl_add_u32 v{V_DW}, v3, 13, v4")
    k(f"v_lshl_add_u32 v{V_DKV}, v3, 8, v4")
    k(f"s_mul_i32 s{S_W4160}, s{S_WAVE}, {4 * GRP}")
    k("s_waitcnt lgkmcnt(0)")
    k("s_lshl_b32 s5, s4, 18")
    k(f"s_lshl_b32 s6, s{S_WAVE}, 16")
    k("s_add_u32 s5, s5, s6")
    srd(k, SX, 54, 65536, XN_OFF, 5)
    k("s_lshl_b32 s5, s3, 8")
    srd(k, SW, 52, 512 * 8192 - 31 * 256, 0, 5)
    k("s_lshl_b32 s5, s3, 19")
    srd(k, SK, 48, 131072, 393216, 5)
    srd(k, SV, 50, 131072, 393216, 5)
    k("s_lshl_b32 s5, s4, 21")
    k(f"s_lshl_b32 s6, s{S_WAVE}, 19")
    k("s_add_u32 s5, s5, s6")
    k("s_lshl_b32 s6, s3, 13")
    k("s_add_u32 s5, s5, s6")
    srd(k, SO, 54, 262144 + 8192, O_OFF, 5)
    k(f"s_mov_b32 s{S_X0}, 0")
    k(f"s_mov_b32 s{S_X1}, 32768")
    k(f"s_lshl_b32 s{S_WSO}, s{S_WAVE}, 17")

    def x_loads(u, ks):
        return [
            (f"buffer_load_dwordx4 {a(XR(u, ks, qb), 4)}, v{V_L16}, {s(SX, 4)}, s{S_X0 + qb} offen offset:{1024 * ks}", f"x{u}")
            for qb in range(2)
        ]

    def x_bump():
        return [f"s_add_u32 s{S_X0}, s{S_X0}, 4096", f"s_add_u32 s{S_X1}, s{S_X1}, 4096"]

    def dma_w(u):
        out = []
        for n in range(4):
            out.append([
                f"s_add_u32 m0, s{S_W4160}, {(u % 8) * SLOT + n * GRP}",
                (f"buffer_load_dwordx4 v{V_DW}, {s(SW, 4)}, s{S_WSO} offen lds", f"U{u}"),
                f"s_add_u32 s{S_WSO}, s{S_WSO}, {32768 if n < 3 else 64 * 8192 - 3 * 32768}",
            ])
        return out

    def dma_kv_static(isv, t):
        slot = (2 * t + isv) % 8
        out = []
        for n in range(4):
            g = []
            if n == 0:
                g.append(f"s_lshl_b32 s{S_T0}, s{S_WAVE}, 12")
                g.append(f"s_add_u32 s{S_T0}, s{S_T0}, {t * 16384}")
            g.append(f"s_add_u32 m0, s{S_W4160}, {slot * SLOT + n * 16}")
            g.append((f"buffer_load_dwordx4 v{V_DKV}, {s(SV if isv else SK, 4)}, s{S_T0} offen offset:{1024 * n} lds",
                      f"{'V' if isv else 'K'}{t}"))
            out.append(g)
        return out

    for u in range(2):
        for ks in range(4):
            for i in x_loads(u, ks):
                k.add(i)
        for i in x_bump():
            k.add(i)
        for g in dma_w(u):
            for i in g:
                k.add(i)
    for u in range(2, 4):
        for g in dma_w(u):
            for i in g:
                k.add(i)

    k("v_and_b32 v3, 31, v2")
    k("v_lshrrev_b32 v4, 5, v2")
    k("v_and_b32 v5, 3, v3")
    k("v_bfe_u32 v6, v3, 2, 1")
    k("v_bfe_u32 v7, v3, 3, 1")
    k("v_lshl_add_u32 v6, v6, 1, v7")
    k("v_bfe_u32 v7, v3, 4, 1")
    k("v_lshl_add_u32 v6, v7, 2, v6")
    k(f"v_mul_u32_u24 v6, {GRP}, v6")
    k("v_lshl_add_u32 v6, v5, 8, v6")
    k("v_lshl_add_u32 v6, v4, 4, v6")
    for dsh in range(4):
        k(f"v_xor_b32 v7, {dsh}, v5")
        k(f"v_lshl_add_u32 v{V_KA + dsh}, v7, 6, v6")
    k("v_bfe_u32 v5, v2, 2, 2")
    k(f"v_mul_u32_u24 v6, {2 * GRP}, v4")
    k("v_lshl_add_u32 v6, v5, 8, v6")
    k("v_bfe_u32 v7, v2, 4, 1")
    k("v_lshl_add_u32 v6, v7, 5, v6")
    k("v_and_b32 v7, 1, v2")
    k("v_lshl_add_u32 v6, v7, 4, v6")
    k("v_bfe_u32 v7, v2, 1, 1")
    k("v_lshl_add_u32 v6, v7, 3, v6")
    for db in range(4):
        k(f"v_xor_b32 v7, {db}, v5")
        k(f"v_lshl_add_u32 v{V_VA + db}, v7, 6, v6")
    k(f"s_mov_b32 s45, {2 * SLOT}")
    k(f"s_mov_b32 s{S_THR}, {f32(65536.0)}")
    k(f"s_mov_b32 s{S_SC}, {f32(LOG2E * 128 ** -0.5)}")

    vbase = [0]

    def run_stream(frags, slots, fstart, lookahead_frags, primed):
        allf = frags + lookahead_frags
        nxt = primed
        while nxt < min(LOOK, len(allf)):
            emit_reads(allf[nxt])
            nxt += 1
        for fi, fr in enumerate(frags):
            for h in range(2):
                k.add(fr["mf"][h])
                fl = list(slots[2 * fi + h]) if 2 * fi + h < len(slots) else []
                if h == 0 and nxt < len(allf) and nxt <= fi + LOOK:
                    emit_reads(allf[nxt])
                    nxt += 1
                for i in fl:
                    if callable(i):
                        i()
                    else:
                        k.add(i)
        return nxt - len(frags)

    def emit_reads(fr):
        for p in fr.get("pre", []):
            if callable(p):
                p()
            else:
                k.add(p)
        for r in fr["reads"]:
            k.add(r)

    def barrier_for(*tags):
        def f():
            for t in tags:
                k.wait_tag(t)
            k("s_barrier")
        return f

    fcount = [0]

    def w_frags(u):
        fr = []
        for ks in range(4):
            for db in range(4):
                f = fcount[0]
                fcount[0] += 1
                pre = []
                if ks == 0 and db == 0:
                    pre.append(barrier_for(f"U{u}"))
                    if u * SLOT + 3 * 4 * GRP + GRP - vbase[0] > 65535:
                        d = u * SLOT - vbase[0]
                        pre += [f"v_add_u32 v{V_VA + j}, {d}, v{V_VA + j}" for j in range(4)]
                        vbase[0] = u * SLOT
                off = u * SLOT - vbase[0] + ks * 4 * GRP
                fr.append(dict(
                    pre=pre,
                    reads=[f"ds_read_b64_tr_b16 {a(AF(f), 2)}, v{V_VA + db} offset:{off}",
                           f"ds_read_b64_tr_b16 {a(AF(f) + 2, 2)}, v{V_VA + db} offset:{off + GRP}"],
                    mf=[f"{MF} {v(QA(qb, db), 16)}, {a(AF(f), 4)}, {a(XR(u, ks, qb), 4)}, "
                        + ("0" if (u == 0 and ks == 0) else v(QA(qb, db), 16)) for qb in range(2)]))
        return fr

    units = [w_frags(u) for u in range(8)]
    primed = 0
    zi = 0
    for u in range(8):
        slots = [[] for _ in range(32)]
        if u + 2 < 8:
            for ks in range(4):
                slots[8 * ks + 7] += x_loads(u + 2, ks)
            slots[31] += x_bump()
        if u < 4:
            dm = dma_w(u + 4)
        else:
            dm = dma_kv_static((u - 4) & 1, (u - 4) >> 1)
        for n in range(4):
            slots[8 * n + 2] += dm[n]
        for sl in range(32):
            if sl % 2 == 1 and zi < 128:
                slots[sl].append(f"v_accvgpr_write_b32 a{zi}, 0")
                zi += 1
        primed = run_stream(units[u], slots, 0, units[u + 1][:LOOK] if u < 7 else [], primed)

    for j in range(4):
        k(f"v_add_u32 v{V_VA + j}, {(SLOT - vbase[0]) & 0xffffffff}, v{V_VA + j}")

    def k_frags(kb, pre0=None, buf=0, cinit=True):
        fr = []
        for ds in range(8):
            f = fcount[0]
            fcount[0] += 1
            fr.append(dict(
                pre=(pre0 or []) if ds == 0 else [],
                reads=[f"ds_read_b128 {a(AF(f), 4)}, v{V_KA + (ds >> 1)} offset:{kb * 8 * GRP + (ds & 1) * 32}"],
                mf=[f"{MF} {v(S_(buf, qb), 16)}, {a(AF(f), 4)}, {v(QF(qb, ds), 4)}, "
                    + ((v(NM(qb), 16) if cinit else "0") if ds == 0 else v(S_(buf, qb), 16)) for qb in range(2)]))
        return fr

    def v_frags(par, pre0=None):
        fr = []
        for ks in range(2):
            for db in range(4):
                f = fcount[0]
                fcount[0] += 1
                off = (par * 2 + ks) * 4 * GRP
                fr.append(dict(
                    pre=(pre0 or []) if (ks == 0 and db == 0) else [],
                    reads=[f"ds_read_b64_tr_b16 {a(AF(f), 2)}, v{V_VA + db} offset:{off}",
                           f"ds_read_b64_tr_b16 {a(AF(f) + 2, 2)}, v{V_VA + db} offset:{off + GRP}"],
                    mf=[f"{MF} {a(O_(qb, db), 16)}, {a(AF(f), 4)}, {v(P_(par, qb, ks), 4)}, {a(O_(qb, db), 16)}"
                        for qb in range(2)]))
        return fr

    def softmax_fill(slots, buf, nslots):
        seq = []
        for qb in range(2):
            for r in range(16):
                seq.append((qb, r))
        per = len(seq) / nslots
        pend = []
        e = 0
        for sl in range(nslots):
            todo = []
            while e < len(seq) and e < (sl + 1) * per - 1e-9:
                todo.append(e)
                e += 1
            new_pend = []
            for x in todo:
                qb, r = seq[x]
                slots[sl].append(f"v_exp_f32 v{V_E + x % 8}, v{S_(buf, qb) + r}")
                new_pend.append(x)
                slots[sl] += post(pend, seq, buf)
                pend = [x]
            if not todo:
                pass
        return post(pend, seq, buf)

    def post(pend, seq, buf):
        out = []
        for x in pend:
            qb, r = seq[x]
            if r == 1:
                out.append(f"v_add_f32 v{V_TS + qb}, v{V_E + (x - 1) % 8}, v{V_E + x % 8}")
            elif r > 1:
                out.append(f"v_add_f32 v{V_TS + qb}, v{V_TS + qb}, v{V_E + x % 8}")
            if r & 1:
                out.append(f"v_cvt_pk_bf16_f32 v{P_(buf, qb, r >> 3) + ((r & 7) >> 1)}, v{V_E + (x - 1) % 8}, v{V_E + x % 8}")
        return out

    rare_id = [0]

    def check(buf):
        rid = rare_id[0]
        rare_id[0] += 1
        k(f"v_max_f32 v{V_T}, v{V_TS}, v{V_TS + 1}")
        k(f"v_cmp_lt_f32 vcc, s{S_THR}, v{V_T}")
        k(f"s_cbranch_vccnz L_rare{rid}")
        k(f"L_back{rid}:")
        k(f"v_add_f32 v{V_L}, v{V_L}, v{V_TS}")
        k(f"v_add_f32 v{V_L + 1}, v{V_L + 1}, v{V_TS + 1}")
        r = Kernel("rare")
        r(f"L_rare{rid}:")
        r("s_nop 15")
        for qb in range(2):
            sc, sn = S_(buf, qb), S_(buf ^ 1, qb)
            m, t = V_T, V_T + 1
            r(f"v_max3_f32 v{m}, v{sc}, v{sc + 1}, 0")
            for i in range(2, 16, 2):
                r(f"v_max3_f32 v{m}, v{sc + i}, v{sc + i + 1}, v{m}")
            r(f"v_mov_b32 v{t}, v{m}")
            r(f"v_permlane32_swap_b32 v{m}, v{t}")
            r(f"v_max_f32 v{m}, v{m}, v{t}")
            r(f"v_exp_f32 v{t}, -v{m}")
            for i in range(16):
                r(f"v_sub_f32 v{sc + i}, v{sc + i}, v{m}")
                r(f"v_sub_f32 v{sn + i}, v{sn + i}, v{m}")
                r(f"v_sub_f32 v{NM(qb) + i}, v{NM(qb) + i}, v{m}")
            r(f"v_mul_f32 v{V_L + qb}, v{V_L + qb}, v{t}")
            for i in range(64):
                r(f"v_accvgpr_read_b32 v{V_T + 2 + i % 4}, a{O_(qb, 0) + i}")
                r(f"v_mul_f32 v{V_T + 2 + i % 4}, v{V_T + 2 + i % 4}, v{t}")
                r(f"v_accvgpr_write_b32 a{O_(qb, 0) + i}, v{V_T + 2 + i % 4}")
            r(f"v_mov_b32 v{V_TS + qb}, 0")
            for i in range(0, 16, 2):
                r(f"v_exp_f32 v{V_E}, v{sc + i}")
                r(f"v_exp_f32 v{V_E + 1}, v{sc + i + 1}")
                r(f"v_add_f32 v{V_TS + qb}, v{V_TS + qb}, v{V_E}")
                r(f"v_add_f32 v{V_TS + qb}, v{V_TS + qb}, v{V_E + 1}")
                r(f"v_cvt_pk_bf16_f32 v{P_(buf, qb, i >> 3) + ((i & 7) >> 1)}, v{V_E}, v{V_E + 1}")
        r("s_nop 3")
        r(f"s_branch L_back{rid}")
        r.finalize()
        k.tail.append(r.text())

    kf0 = k_frags(0, [barrier_for("K0")], buf=0, cinit=False)
    for fi in range(LOOK):
        emit_reads(kf0[fi])
    for qb in range(2):
        for db in range(4):
            for g in range(2):
                for t in range(4):
                    r0 = QA(qb, db) + 8 * g + 2 * t
                    k(f"v_mul_f32 v{r0}, s{S_SC}, v{r0}")
                    k(f"v_mul_f32 v{r0 + 1}, s{S_SC}, v{r0 + 1}")
                    k(f"v_cvt_pk_bf16_f32 v{QF(qb, 2 * db + g) + t}, v{r0}, v{r0 + 1}")
    kf1 = k_frags(1, None, buf=1)
    slots = [[] for _ in range(16)]
    dm = dma_kv_static(0, 2)
    for n in range(4):
        slots[4 * n + 1] += dm[n]
    primed = run_stream(kf0, slots, 0, kf1[:LOOK], LOOK)
    for qb in range(2):
        sc = S_(0, qb)
        m, t = V_T + 2 * qb, V_T + 2 * qb + 1
        k(f"v_max3_f32 v{m}, v{sc}, v{sc + 1}, v{sc + 2}")
        for i in range(3, 15, 2):
            k(f"v_max3_f32 v{m}, v{sc + i}, v{sc + i + 1}, v{m}")
        k(f"v_max_f32 v{m}, v{sc + 15}, v{m}")
        k(f"v_mov_b32 v{t}, v{m}")
        k(f"v_permlane32_swap_b32 v{m}, v{t}")
        k(f"v_max_f32 v{m}, v{m}, v{t}")
        for i in range(16):
            k(f"v_sub_f32 v{NM(qb) + i}, 0, v{m}")
        for i in range(16):
            k(f"v_sub_f32 v{sc + i}, v{sc + i}, v{m}")
        k(f"v_mov_b32 v{V_L + qb}, 0")
    k(f"s_lshl_b32 s{S_T0}, s{S_WAVE}, 12")
    k(f"s_add_u32 s{S_KSO}, s{S_T0}, {3 * 16384}")
    k(f"s_add_u32 s{S_VSO}, s{S_T0}, {2 * 16384}")
    k(f"s_add_u32 s{S_KM}, s{S_W4160}, {6 * SLOT}")
    k(f"s_add_u32 s{S_VM}, s{S_W4160}, {5 * SLOT}")
    k(f"s_mov_b32 s{S_KRD}, 0")
    k(f"s_mov_b32 s{S_VRD}, {SLOT}")
    k(f"s_mov_b32 s{S_CNT}, 0")

    def adv_read(sreg, vreg, lim):
        return [
            f"s_cmp_ge_u32 s{sreg}, {lim - 2 * SLOT}",
            f"s_cselect_b32 s{S_T1}, {(-6 * SLOT) & 0xffffffff}, s45",
            f"s_add_u32 s{sreg}, s{sreg}, s{S_T1}",
        ] + [f"v_add_u32 v{vreg + j}, s{S_T1}, v{vreg + j}" for j in range(4)]

    def dma_dyn(isv):
        so, mm, sr, tag = (S_VSO, S_VM, SV, "Vd") if isv else (S_KSO, S_KM, SK, "Kd")
        out = []
        for n in range(4):
            g = [f"s_add_u32 m0, s{mm}, {16 * n}",
                 (f"buffer_load_dwordx4 v{V_DKV}, {s(sr, 4)}, s{so} offen offset:{1024 * n} lds", tag)]
            if n == 3:
                g += [f"s_add_u32 s{so}, s{so}, 16384",
                      f"s_add_u32 s{mm}, s{mm}, {2 * SLOT}",
                      f"s_cmp_ge_u32 s{mm}, {8 * SLOT}",
                      f"s_cselect_b32 s{S_T0}, {8 * SLOT}, 0",
                      f"s_sub_u32 s{mm}, s{mm}, s{S_T0}"]
            out.append(g)
        return out

    wait8 = lambda: (k("s_waitcnt vmcnt(8)"), k("s_barrier"))
    assert fcount[0] % NRING == 0
    save = fcount[0]
    lk0 = k_frags(0, adv_read(S_KRD, V_KA, 8 * SLOT) + [barrier_for("K1", "V0")], buf=0)
    fcount[0] = save
    slots = [[] for _ in range(16)]
    tailp = softmax_fill(slots, 0, 16)
    primed = run_stream(kf1, slots, 0, lk0[:LOOK], primed)
    for i in tailp:
        k.add(i)
    check(0)

    def iteration(last):
        nonlocal primed
        save = fcount[0]
        q0 = [] if last else k_frags(0, None, buf=0)
        p0 = v_frags(0)
        q1 = [] if last else k_frags(1, None, buf=1)
        p1 = v_frags(1)
        if not last:
            assert (fcount[0] - save) % NRING == 0
            save2 = fcount[0]
            nq0 = k_frags(0, adv_read(S_KRD, V_KA, 8 * SLOT) + [wait8], buf=0)
            fcount[0] = save2
        else:
            nq0 = []
        n0 = 2 * (len(q0) + len(p0))
        slots = [[] for _ in range(n0)]
        tailp = softmax_fill(slots, 1, n0)
        if not last:
            dm = dma_dyn(0)
            for n in range(4):
                slots[2 * n + 3] += dm[n]
        primed = run_stream(q0 + p0, slots, 0, (q1 + p1)[:LOOK], primed)
        for i in tailp:
            k.add(i)
        check(1)
        slots = [[] for _ in range(n0)]
        if not last:
            tailp = softmax_fill(slots, 0, n0)
            dm = dma_dyn(1)
            for n in range(4):
                slots[2 * n + 3] += dm[n]
        primed = run_stream(q1 + p1, slots, 0, nq0[:LOOK], primed)
        if not last:
            for i in adv_read(S_VRD, V_VA, 8 * SLOT):
                k.add(i)
            for i in tailp:
                k.add(i)
            check(0)

    k.loop_begin("L_att_loop")
    iteration(False)
    k(f"s_add_u32 s{S_CNT}, s{S_CNT}, 1")
    k(f"s_cmp_lt_u32 s{S_CNT}, 7")
    k("s_cbranch_scc1 L_att_loop")
    k.loop_end()
    primed = 0
    fcount[0] += LOOK
    iteration(True)

    for qb in range(2):
        l, t = V_L + qb, V_T
        k(f"v_mov_b32 v{t}, v{l}")
        k(f"v_permlane32_swap_b32 v{l}, v{t}")
        k(f"v_add_f32 v{l}, v{l}, v{t}")
        k(f"v_rcp_f32 v{l}, v{l}")
    k(f"s_mov_b32 s{S_T0}, 4096")
    k(f"s_mov_b32 s{S_T1}, 262144")
    k(f"s_mov_b32 s{S_D}, {262144 + 4096}")
    n = 0
    for qb in range(2):
        for db in range(4):
            for g in range(2):
                tb = ACC + (n % 4) * 16
                n += 1
                for i in range(8):
                    k(f"v_accvgpr_read_b32 v{tb + i}, a{O_(qb, db) + 8 * g + i}")
                for i in range(8):
                    k(f"v_mul_f32 v{tb + i}, v{tb + i}, v{V_L + qb}")
                for t in range(4):
                    k(f"v_cvt_pk_bf16_f32 v{tb + 8 + t}, v{tb + 2 * t}, v{tb + 2 * t + 1}")
                fi = 2 * db + g
                so = ["0", f"s{S_T0}", f"s{S_T1}", f"s{S_D}"][qb * 2 + (fi >> 2)]
                k(f"buffer_store_dwordx4 {v(tb + 8, 4)}, v{V_L16}, {s(SO, 4)}, {so} offen offset:{(fi & 3) * 1024}")
    k("L_attn_end:")
    k("s_endpgm")
    k.finalize(lgkm_slack=0, verbose=True)
    return header("attn_kernel") + k.text(), descriptor("attn_kernel", 512, 256, 64), 8 * SLOT


def gen_oproj(D=8):
    k = Kernel("oproj_kernel")
    SO, SWo, SXi, SXN, SOUT, SR, SY = 8, 12, 16, 20, 24, 28, 32
    S_WAVE, S_M0, S_WSO, S_O0, S_O1, S_CNT, S_ROW0, S_TC, S_IDX, S_MASK, S_KEY = 36, 37, 38, 39, 40, 41, 42, 43, 44, 45, 46
    V_L16, V_DW0, V_DW1, V_A0 = 8, 9, 10, 12
    V_XO, V_NO = 14, 15
    XI, XNV = 16, 24
    YV = 32
    OB = 80
    AFR = OB + 8 * D
    ACC = AFR + 16
    assert ACC + 64 <= 256
    k("s_cmp_ge_u32 s2, 256")
    k("s_cbranch_scc1 L_op_end")
    k(f"s_load_dwordx2 s[48:49], s[0:1], {KA_X}")
    k(f"s_load_dwordx2 s[50:51], s[0:1], {KA_WO}")
    k(f"s_load_dwordx2 s[52:53], s[0:1], {KA_OUT}")
    k(f"s_load_dwordx2 s[54:55], s[0:1], {KA_WS}")
    k("v_lshrrev_b32 v1, 6, v0")
    k("v_and_b32 v2, 63, v0")
    k(f"v_readfirstlane_b32 s{S_WAVE}, v1")
    k("s_and_b32 s3, s2, 7")
    k("s_lshr_b32 s4, s2, 3")
    k("s_and_b32 s5, s4, 3")
    k("s_lshl_b32 s3, s3, 2")
    k("s_add_u32 s3, s3, s5")
    k(f"s_lshr_b32 s{S_TC}, s4, 2")
    k(f"s_lshl_b32 s{S_ROW0}, s3, 6")
    k(f"v_lshlrev_b32 v{V_L16}, 4, v2")
    k("v_lshrrev_b32 v3, 3, v2")
    k("v_and_b32 v4, 7, v2")
    k("v_bfe_u32 v5, v2, 4, 1")
    k("v_lshlrev_b32 v5, 2, v5")
    k("v_xor_b32 v4, v4, v5")
    k("v_lshlrev_b32 v4, 4, v4")
    k(f"v_lshl_add_u32 v{V_DW0}, v3, 10, v4")
    k(f"v_add_u32 v{V_DW1}, 7168, v{V_DW0}")
    k(f"s_lshl_b32 s{S_M0}, s{S_WAVE}, 14")
    k(f"s_add_u32 s{S_M0}, s{S_M0}, 2048")
    k(f"s_lshl_b32 s{S_WSO}, s{S_WAVE}, 20")
    k("s_waitcnt lgkmcnt(0)")
    k("s_lshl_b32 s5, s3, 19")
    k(f"s_lshl_b32 s6, s{S_WAVE}, 16")
    k("s_add_u32 s5, s5, s6")
    srd(k, SO, 54, 262144 + 65536, O_OFF, 5)
    k(f"s_lshl_b32 s5, s{S_TC}, 7")
    srd(k, SWo, 50, 4096 * 1024 - 7 * 128, 0, 5)
    srd(k, SXi, 48, XN_SZ)
    srd(k, SXN, 54, XN_SZ, XN_OFF)
    srd(k, SOUT, 52, XN_SZ)
    srd(k, SR, 54, R_SZ, R_OFF)
    srd(k, SY, 54, YP_SZ, YP_OFF)
    k(f"s_mov_b32 s{S_O0}, 0")
    k(f"s_mov_b32 s{S_O1}, 262144")

    def group(pos):
        g = [f"s_add_u32 m0, s{S_M0}, {pos * 2048}",
             (f"buffer_load_dwordx4 {v(OB + 8 * pos, 4)}, v{V_L16}, {s(SO, 4)}, s{S_O0} offen offset:{(pos & 3) * 1024}", f"g{pos}"),
             (f"buffer_load_dwordx4 v{V_DW0}, {s(SWo, 4)}, s{S_WSO} offen lds", f"g{pos}"),
             (f"buffer_load_dwordx4 {v(OB + 8 * pos + 4, 4)}, v{V_L16}, {s(SO, 4)}, s{S_O1} offen offset:{(pos & 3) * 1024}", f"g{pos}"),
             (f"buffer_load_dwordx4 v{V_DW1}, {s(SWo, 4)}, s{S_WSO} offen offset:1024 lds", f"g{pos}"),
             f"s_add_u32 s{S_WSO}, s{S_WSO}, 16384"]
        if pos & 3 == 3:
            g += [f"s_add_u32 s{S_O0}, s{S_O0}, 4096", f"s_add_u32 s{S_O1}, s{S_O1}, 4096"]
        return g

    for pos in range(D):
        for i in group(pos):
            k.add(i)
    k(f"s_and_b32 s5, s{S_WAVE}, 1")
    k(f"s_lshr_b32 s6, s{S_WAVE}, 1")
    k("v_and_b32 v3, 31, v2")
    k("v_lshrrev_b32 v4, 5, v2")
    k("s_lshl_b32 s7, s6, 5")
    k(f"s_add_u32 s7, s7, s{S_ROW0}")
    k("v_add_u32 v7, s7, v3")
    k(f"v_lshlrev_b32 v{V_XO}, 10, v7")
    k(f"v_lshl_add_u32 v{V_XO}, v4, 4, v{V_XO}")
    k(f"s_lshl_b32 s56, s{S_TC}, 7")
    k("s_lshl_b32 s57, s5, 6")
    k("s_add_u32 s56, s56, s57")
    k(f"buffer_load_dwordx4 {v(XI, 4)}, v{V_XO}, {s(SXi, 4)}, s56 offen", "ep")
    k(f"buffer_load_dwordx4 {v(XI + 4, 4)}, v{V_XO}, {s(SXi, 4)}, s56 offen offset:32", "ep")
    k("s_lshl_b32 s57, s7, 10")
    k("s_lshl_b32 s58, s56, 5")
    k("s_add_u32 s57, s57, s58")
    k(f"buffer_load_dwordx4 {v(XNV, 4)}, v{V_L16}, {s(SXN, 4)}, s57 offen", "ep")
    k(f"buffer_load_dwordx4 {v(XNV + 4, 4)}, v{V_L16}, {s(SXN, 4)}, s57 offen offset:1024", "ep")
    k("v_bfe_u32 v5, v2, 2, 2")
    k("v_lshlrev_b32 v6, 10, v4")
    k("v_lshl_add_u32 v6, v5, 7, v6")
    k("v_bfe_u32 v3, v2, 4, 1")
    k("v_lshl_add_u32 v6, v3, 5, v6")
    k("v_and_b32 v3, 1, v2")
    k("v_lshl_add_u32 v6, v3, 4, v6")
    k("v_bfe_u32 v3, v2, 1, 1")
    k("v_lshl_add_u32 v6, v3, 3, v6")
    k(f"v_add_u32 v6, s{S_M0}, v6")
    k("v_lshrrev_b32 v5, 1, v5")
    for nb in range(2):
        k(f"v_xor_b32 v3, {nb}, v5")
        k(f"v_lshl_add_u32 v{V_A0 + nb}, v3, 6, v6")

    def areads(pos):
        st = AFR + 8 * (pos & 1)
        out = []
        for nb in range(2):
            for sub in range(2):
                out.append(f"ds_read_b64_tr_b16 {v(st + 4 * nb + 2 * sub, 2)}, v{V_A0 + nb} offset:{pos * 2048 + sub * 512}")
        return out

    def body(first, last):
        for pos in range(D):
            nx = (pos + 1) % D
            st = AFR + 8 * (pos & 1)
            mf = []
            for rb in range(2):
                for nb in range(2):
                    acc = v(ACC + 16 * (2 * rb + nb), 16)
                    mf.append(f"{MF} {acc}, {v(st + 4 * nb, 4)}, {v(OB + 8 * pos + 4 * rb, 4)}, "
                              + ("0" if (first and pos == 0) else acc))
            k.add(mf[0])
            if not (last and pos == D - 1):
                k.wait_tag(f"g{nx}")
                for i in areads(nx):
                    k.add(i)
            k.add(mf[1])
            k.add(mf[2])
            k.add(mf[3])
            if not last:
                for i in group(pos):
                    k.add(i)

    k.wait_tag("g0")
    for i in areads(0):
        k.add(i)
    body(True, False)
    k(f"s_mov_b32 s{S_CNT}, 0")
    k.loop_begin("L_op_loop")
    body(False, False)
    k(f"s_add_u32 s{S_CNT}, s{S_CNT}, 1")
    k(f"s_cmp_lt_u32 s{S_CNT}, {64 // D - 2}")
    k("s_cbranch_scc1 L_op_loop")
    k.loop_end()
    body(False, True)

    k("s_barrier")
    emit_argmax(k, SR, YV, 0)
    k(f"v_readfirstlane_b32 s{S_KEY}, v{YV}")
    k(f"s_and_b32 s{S_IDX}, s{S_KEY}, 0xffff")
    k(f"s_sub_u32 s{S_IDX}, 0xffff, s{S_IDX}")
    k(f"s_sub_u32 s5, s{S_IDX}, s{S_ROW0}")
    k(f"s_mov_b32 s{S_MASK}, 0xffff0000")
    k("s_cmp_lt_u32 s5, 64")
    k("s_cbranch_scc0 L_op_noy")
    k("v_and_b32 v3, 15, v0")
    k("v_lshrrev_b32 v4, 4, v0")
    k("v_lshlrev_b32 v4, 11, v4")
    k("v_lshl_add_u32 v4, v3, 4, v4")
    k(f"s_lshl_b32 s5, s{S_TC}, 8")
    for j in range(11):
        k(f"buffer_load_dwordx4 {v(YV + 4 * j, 4)}, v4, {s(SY, 4)}, s5 offen")
        k("s_add_u32 s5, s5, 32768")
    for j in range(1, 11):
        for c in range(4):
            k(f"v_add_f32 v{YV + c}, v{YV + c}, v{YV + 4 * j + c}")
    for sw in ("v_permlane32_swap_b32", "v_permlane16_swap_b32"):
        for c in range(4):
            k(f"v_mov_b32 v{YV + 4 + c}, v{YV + c}")
        for c in range(4):
            k(f"{sw} v{YV + c}, v{YV + 4 + c}")
        for c in range(4):
            k(f"v_add_f32 v{YV + c}, v{YV + c}, v{YV + 4 + c}")
    k("v_lshlrev_b32 v3, 4, v3")
    k(f"s_lshl_b32 s5, s{S_WAVE}, 8")
    k("v_add_u32 v3, s5, v3")
    k(f"ds_write_b128 v3, {v(YV, 4)} offset:256")
    k("s_waitcnt lgkmcnt(0)")
    k("L_op_noy:")
    k(f"s_lshl_b32 s5, s{S_WAVE}, 12")
    k(f"v_add_u32 v3, s5, v{V_L16}")
    for b in range(4):
        for q in range(4):
            k(f"ds_write_b128 v3, {v(ACC + 16 * b + 4 * q, 4)} offset:{2048 + b * 16384 + q * 1024}")
            if q == 3:
                k.wait_lgkm_all()
    k("s_barrier")
    k(f"s_lshl_b32 s5, s{S_WAVE}, 14")
    k(f"v_add_u32 v3, s5, v{V_L16}")
    R = OB
    for w in range(4):
        for q in range(4):
            k(f"ds_read_b128 {v(R + 16 * w + 4 * q, 4)}, v3 offset:{2048 + w * 4096 + q * 1024}")
        if w == 2:
            k.wait_lgkm_all()
    for i in range(16):
        k(f"v_add_f32 v{R + i}, v{R + i}, v{R + 16 + i}")
        k(f"v_add_f32 v{R + 32 + i}, v{R + 32 + i}, v{R + 48 + i}")
    for i in range(16):
        k(f"v_add_f32 v{R + i}, v{R + i}, v{R + 32 + i}")
    Z = R + 16
    for i in range(8):
        k(f"v_lshlrev_b32 v{Z + 2 * i}, 16, v{XNV + i}")
        k(f"v_and_b32 v{Z + 2 * i + 1}, s{S_MASK}, v{XNV + i}")
    k(f"s_sub_u32 s5, s{S_IDX}, s{S_ROW0}")
    k("s_cmp_lt_u32 s5, 64")
    k("s_cbranch_scc0 L_op_noy2")
    Y = R + 32
    k(f"s_and_b32 s5, s{S_WAVE}, 1")
    k("s_lshl_b32 s5, s5, 7")
    k("v_lshrrev_b32 v4, 5, v2")
    k("v_lshlrev_b32 v4, 5, v4")
    k("v_add_u32 v4, s5, v4")
    for w in range(4):
        dst = Y if w == 0 else Y + 16
        for g in range(2):
            for q in range(2):
                k(f"ds_read_b128 {v(dst + 8 * g + 4 * q, 4)}, v4 offset:{256 + w * 256 + g * 64 + q * 16}")
        if w:
            for i in range(16):
                k(f"v_add_f32 v{Y + i}, v{Y + i}, v{Y + 16 + i}")
    k(f"s_and_b32 s5, s{S_KEY}, 0xffff0000")
    k("s_ashr_i32 s6, s5, 31")
    k("s_not_b32 s6, s6")
    k("s_or_b32 s6, s6, 0x80000000")
    k("s_xor_b32 s5, s5, s6")
    k("s_and_b32 s5, s5, 0xffff0000")
    k("v_mov_b32 v5, s5")
    k(f"v_mul_f32 v5, {f32(-LOG2E)}, v5")
    k("v_exp_f32 v5, v5")
    k("v_add_f32 v5, 1.0, v5")
    k("v_rcp_f32 v5, v5")
    rnd_bf16(k, 5, 5)
    k(f"v_cmp_eq_u32 vcc, s{S_IDX}, v7")
    for i in range(16):
        rnd_bf16(k, Y + i, Y + i)
        k(f"v_mul_f32 v{Y + i}, v{Y + i}, v5")
        rnd_bf16(k, Y + i, Y + i)
        k(f"v_add_f32 v{Y + i}, v{Y + i}, v{Z + i}")
        rnd_bf16(k, Y + i, Y + i)
        k(f"v_cndmask_b32 v{Z + i}, v{Z + i}, v{Y + i}, vcc")
    k("s_nop 1")
    k("L_op_noy2:")
    T = R + 32
    for i in range(16):
        k(f"v_mul_f32 v{T + i}, {f32(-LOG2E)}, v{Z + i}")
    for i in range(16):
        k(f"v_exp_f32 v{T + i}, v{T + i}")
    for i in range(16):
        k(f"v_add_f32 v{T + i}, 1.0, v{T + i}")
    for i in range(16):
        k(f"v_rcp_f32 v{T + i}, v{T + i}")
    for i in range(16):
        k(f"v_mul_f32 v{T + i}, v{T + i}, v{Z + i}")
    for i in range(8):
        k(f"v_cvt_pk_bf16_f32 v{T + 2 * i}, v{T + 2 * i}, v{T + 2 * i + 1}")
        k(f"v_cvt_pk_bf16_f32 v{R + 2 * i}, v{R + 2 * i}, v{R + 2 * i + 1}")
    for i in range(8):
        k(f"v_and_b32 v{T + 2 * i + 1}, s{S_MASK}, v{T + 2 * i}")
        k(f"v_lshlrev_b32 v{T + 2 * i}, 16, v{T + 2 * i}")
        k(f"v_and_b32 v{R + 2 * i + 1}, s{S_MASK}, v{R + 2 * i}")
        k(f"v_lshlrev_b32 v{R + 2 * i}, 16, v{R + 2 * i}")
    for i in range(16):
        k(f"v_mul_f32 v{T + i}, v{T + i}, v{R + i}")
    for i in range(8):
        k(f"v_cvt_pk_bf16_f32 v{T + 2 * i}, v{T + 2 * i}, v{T + 2 * i + 1}")
    for i in range(8):
        k(f"v_and_b32 v{T + 2 * i + 1}, s{S_MASK}, v{T + 2 * i}")
        k(f"v_lshlrev_b32 v{T + 2 * i}, 16, v{T + 2 * i}")
        k(f"v_and_b32 v{R + 2 * i + 1}, s{S_MASK}, v{XI + i}")
        k(f"v_lshlrev_b32 v{R + 2 * i}, 16, v{XI + i}")
    for i in range(16):
        k(f"v_add_f32 v{T + i}, v{T + i}, v{R + i}")
    for i in range(8):
        k(f"v_cvt_pk_bf16_f32 v{Z + i}, v{T + 2 * i}, v{T + 2 * i + 1}")
    k(f"buffer_store_dwordx4 {v(Z, 4)}, v{V_XO}, {s(SOUT, 4)}, s56 offen")
    k(f"buffer_store_dwordx4 {v(Z + 4, 4)}, v{V_XO}, {s(SOUT, 4)}, s56 offen offset:32")
    k("L_op_end:")
    k("s_endpgm")
    k.finalize(verbose=True)
    return header("oproj_kernel") + k.text(), descriptor("oproj_kernel", 256, 256, 64), 65536 + 2048


def main():
    out = sys.argv[1] if len(sys.argv) > 1 else f"cdna_kernels/{NAME}.s"
    c1, d1 = gen_ln()
    c2, d2 = gen_ffn()
    c3, d3, lds3 = gen_attn()
    c4, d4, lds4 = gen_oproj()
    txt = f"""; LayerNorm -> (Q proj + sliding-window attention) -> out proj, gated by routed-token FFN branch
; @launch kernel=ln_kernel grid=(256,1,1) block=(128,1,1) lds=0
; @launch kernel=ffn_kernel grid=({NFF},1,1) block=(256,1,1) lds=2048
; @launch kernel=attn_kernel grid=(256,1,1) block=(256,1,1) lds={lds3}
; @launch kernel=oproj_kernel grid=(256,1,1) block=(256,1,1) lds={lds4}
.amdgcn_target "amdgcn-amd-amdhsa--gfx950"
"""
    txt += c1 + c2 + c3 + c4 + d1 + d2 + d3 + d4
    open(out, "w").write(txt)
    print("wrote", out, len(txt), "bytes")


if __name__ == "__main__":
    main()
```
